```python
import torch

def _softmax(x, axis=-1):
    return torch.softmax(x, dim=axis)
def _gelu(x):
    return torch.nn.functional.gelu(x, approximate="tanh")
def _silu(x):
    return torch.nn.functional.silu(x)
def _sigmoid(x):
    return torch.sigmoid(x)
def _layernorm(x, axis=-1, eps=1e-5):
    m = x.mean(dim=axis, keepdim=True)
    v = x.var(dim=axis, keepdim=True, unbiased=False)
    return (x - m) / torch.sqrt(v + eps)
def _scatter_add(tgt, idx, src, axis=0):
    return tgt.clone().index_add_(axis, idx, src)
def _segment_sum(src, seg, n):
    out = torch.zeros((n,) + src.shape[1:], dtype=src.dtype)
    return out.index_add_(0, seg, src)
def _pad(x, pw):
    flat = tuple(v for pair in reversed(pw) for v in pair)
    return torch.nn.functional.pad(x, flat)

kernel_name = 'concat_heads__sliding_block__softmax_full_mha__prompt'

def setup_inputs():

    _w = (lambda a: (lambda t: t.to(torch.bfloat16) if t.is_floating_point() else t)(torch.as_tensor(a)))
    def _A_setup():
        B, S, D = 1, 2048, 512
        return {
            "x": _w((lambda *s: torch.randn(*s, dtype=torch.bfloat16) * 0.4)(B, S, D)),
            "wqkv": _w((lambda *s: torch.randn(*s, dtype=torch.bfloat16) * 0.4)(D, 3 * D)),
            "wo": _w((lambda *s: torch.randn(*s, dtype=torch.bfloat16) * 0.05)(D, D)),
        }
    _A_in = _A_setup()

    def _B_setup():
        B, S, D = 1, 2048, 512
        return {
            "x": _w((lambda *s: torch.randn(*s, dtype=torch.bfloat16) * 0.2)(B, S, D)),
            "wqkv": _w((lambda *s: torch.randn(*s, dtype=torch.bfloat16) * 0.4)(D, 3 * D)),
            "wo": _w((lambda *s: torch.randn(*s, dtype=torch.bfloat16) * 0.1)(D, D)),
        }
    _B_in = _B_setup()

    return {
        "A_x": _A_in["x"],
        "A_wqkv": _A_in["wqkv"],
        "A_wo": _A_in["wo"],
        "B_x": _B_in["x"],
        "B_wqkv": _B_in["wqkv"],
        "B_wo": _B_in["wo"],
    }

def reference(A_x, A_wqkv, A_wo, B_x, B_wqkv, B_wo):
    def _A_ref(x, wqkv, wo):
        B, S, D = x.shape
        H = 32; Dh = D // H; W = 256
        qkv = (lambda x, *d: x.permute(*d))((x @ wqkv).reshape(B, S, 3, H, Dh), 2, 0, 3, 1, 4)
        q, k, v = qkv[0], qkv[1], qkv[2]
        scores = torch.einsum("bhqd,bhkd->bhqk", q, k) * (Dh ** -0.5)
        idx = torch.arange(S)
        mask = (idx[:, None] - idx[None, :] >= 0) & (idx[:, None] - idx[None, :] < W)
        scores = torch.where(mask[None, None], scores, -1e9)
        p = _softmax(scores, axis=-1)
        o = torch.einsum("bhqk,bhkd->bhqd", p, v)
        return (lambda x, *d: x.permute(*d))(o, 0, 2, 1, 3).reshape(B, S, D) @ wo

    def _B_ref(x, wqkv, wo):
        B, S, D = x.shape
        H = 32; Dh = D // H
        qkv = (lambda x, *d: x.permute(*d))((x @ wqkv).reshape(B, S, 3, H, Dh), 2, 0, 3, 1, 4)
        q, k, v = qkv[0], qkv[1], qkv[2]
        scale = Dh ** -0.5
        scores = torch.einsum("bhqd,bhkd->bhqk", q, k) * scale
        p = _softmax(scores, axis=-1)
        o = torch.einsum("bhqk,bhkd->bhqd", p, v)
        return (lambda x, *d: x.permute(*d))(o, 0, 2, 1, 3).reshape(B, S, D) @ wo

    a = _A_ref(A_x, A_wqkv, A_wo)
    b = _B_ref(B_x, B_wqkv, B_wo)
    return torch.concatenate([a, b], axis=-1)
```

```python
import re
_VR = re.compile(r'\bv\[(\d+):(\d+)\]|\bv(\d+)\b')
_TRANS = ('v_exp_f32','v_log_f32','v_rcp_f32','v_rsq_f32','v_sqrt_f32','v_sin_f32','v_cos_f32','v_exp_f16')
def vregs(txt):
    s = set()
    for m in _VR.finditer(txt):
        if m.group(1) is not None:
            s.update(range(int(m.group(1)), int(m.group(2))+1))
        else:
            s.add(int(m.group(3)))
    return s
class Asm:
    def __init__(self):
        self.lines = []
        self.hist = []
    def raw(self, txt):
        self.lines.append(txt)
    def comment(self, txt):
        self.lines.append('    ; ' + txt)
    def label(self, name):
        self.flush()
        self.lines.append(name + ':')
        self.hist = []
    def flush(self):
        need = 0
        n = len(self.hist)
        for i, h in enumerate(self.hist):
            dist = n - 1 - i
            w = h['maxwait']
            need = max(need, w - dist)
        if need > 0:
            self._nop(need)
    def _nop(self, n):
        while n > 0:
            k = min(n, 16)
            self.lines.append(f'    s_nop {k-1}')
            for _ in range(k):
                self.hist.append({'kind':'nop','dst':set(),'srcC':set(),'maxwait':0,'sdst':False})
            n -= k
        self.hist = self.hist[-40:]
    def __call__(self, txt):
        txt = txt.strip()
        mn = txt.split()[0]
        ops = txt[len(mn):]
        parts = [p.strip() for p in ops.split(',')]
        is_mfma = mn.startswith('v_mfma')
        is_valu = mn.startswith('v_') and not is_mfma
        is_store = ('store' in mn) or mn.startswith('ds_write')
        is_vmem = mn.startswith('buffer_') or mn.startswith('global_')
        is_ds = mn.startswith('ds_')
        lds_dma = is_vmem and txt.endswith(' lds')
        if is_store or lds_dma or mn.startswith('v_cmp') or mn.startswith('v_readfirstlane') or mn.startswith('v_readlane') or mn.startswith('s_'):
            dst = set(); src = vregs(ops)
        else:
            dst = vregs(parts[0]); src = vregs(','.join(parts[1:]))
        if mn in ('v_fmac_f32',) or mn.startswith('v_permlane') :
            src |= dst
            if mn.startswith('v_permlane'):
                dst |= vregs(parts[1])
        srcC = vregs(parts[3]) if is_mfma else set()
        srcAB = vregs(parts[1]) | vregs(parts[2]) if is_mfma else set()
        need = 0
        n = len(self.hist)
        rw = dst | src
        for i, h in enumerate(self.hist):
            dist = n - 1 - i
            w = 0
            k = h['kind']
            if k == 'mfma':
                if is_mfma:
                    if h['dst'] & srcAB: w = max(w, 12)
                    if h['dst'] & srcC:
                        if h['dst'] == srcC: w = max(w, 0)
                        else: w = max(w, 10)
                    if h['dst'] & dst and h['dst'] != srcC: w = max(w, 12)
                else:
                    if h['dst'] & rw: w = max(w, 12)
                    if is_valu and (h['srcC'] & dst): w = max(w, 7)
            elif k in ('valu','trans'):
                if is_mfma and (h['dst'] & (srcAB | srcC)): w = max(w, 2)
                if k == 'trans' and (is_valu or is_mfma) and (h['dst'] & src): w = max(w, 1)
                if (mn.startswith('v_permlane') or 'dpp' in txt) and (h['dst'] & src): w = max(w, 2)
                if (mn.startswith('v_readfirstlane') or mn.startswith('v_readlane')) and (h['dst'] & src): w = max(w, 1)
            elif k == 'vsdst':
                if is_valu: w = max(w, 2)
                if is_vmem: w = max(w, 5)
                if mn.startswith('v_readlane') or mn.startswith('v_writelane'): w = max(w,4)
            elif k == 'store':
                if not is_store and (h['data'] & dst): w = max(w, 2)
            elif k == 'm0':
                if lds_dma: w = max(w, 1)
            need = max(need, w - dist)
        if need > 0:
            self._nop(need)
        self.lines.append('    ' + txt)
        ent = {'kind':'other','dst':dst,'srcC':set(),'maxwait':0}
        if is_mfma: ent = {'kind':'mfma','dst':dst,'srcC':srcC,'maxwait':12}
        elif mn in _TRANS: ent = {'kind':'trans','dst':dst,'srcC':set(),'maxwait':2}
        elif mn.startswith('v_cmp') or mn.startswith('v_readfirstlane') or mn.startswith('v_readlane') or '_co_' in mn:
            ent = {'kind':'vsdst','dst':dst,'srcC':set(),'maxwait':5}
        elif is_valu: ent = {'kind':'valu','dst':dst,'srcC':set(),'maxwait':2}
        elif is_store and ('x4' in mn or 'x3' in mn or 'b128' in mn):
            ent = {'kind':'store','dst':set(),'srcC':set(),'maxwait':2,'data':src}
        elif mn == 's_mov_b32' and parts[0] == 'm0':
            ent = {'kind':'m0','dst':set(),'srcC':set(),'maxwait':1}
        self.hist.append(ent)
        self.hist = self.hist[-40:]
    def text(self):
        return '\n'.join(self.lines) + '\n'
```

```python
from asmlib import Asm
WS_Q = 0
WS_K = 4*1024*1024
WS_V = 8*1024*1024
WS_O = 12*1024*1024
WS_BYTES = 16*1024*1024
CSCALE_HEX = None
import struct, math
def f32hex(x): return '0x%08x' % struct.unpack('<I', struct.pack('<f', x))[0]
CSCALE = 0.25 * math.log2(math.e)

def gen_k1(a: Asm, name='qkv_kernel'):
    A = a
    A.raw(f'.globl {name}\n.p2align 8\n.type {name},@function\n{name}:')
    A('s_cmp_ge_u32 s2, 256')
    A('s_cbranch_scc1 L_k1_end')
    A('s_lshr_b32 s24, s2, 7')
    A('s_mul_i32 s25, s24, 24')
    A('s_add_u32 s26, s0, s25')
    A('s_addc_u32 s27, s1, 0')
    A('s_load_dwordx4 s[4:7], s[26:27], 0')
    A('s_load_dwordx2 s[8:9], s[0:1], 64')
    A('s_and_b32 s28, s2, 127')
    A('s_lshr_b32 s29, s28, 3')
    A('s_and_b32 s30, s28, 7')
    A('v_and_b32 v1, 63, v0')
    A('v_lshrrev_b32 v2, 6, v0')
    A('s_nop 0')
    A('v_readfirstlane_b32 s31, v2')
    A('s_waitcnt lgkmcnt(0)')
    for (d, lo, hi, sz) in ((12,4,5,2097152),(16,6,7,1572864),(20,8,9,12*1024*1024)):
        A(f's_mov_b32 s{d}, s{lo}')
        A(f's_and_b32 s{d+1}, s{hi}, 0xffff')
        A(f's_mov_b32 s{d+2}, {sz}')
        A(f's_mov_b32 s{d+3}, 0x00020000')
    A('s_lshl_b32 s32, s29, 7')
    A('s_lshl_b32 s33, s31, 5')
    A('s_add_u32 s32, s32, s33')
    A('v_and_b32 v4, 31, v1')
    A('v_add_u32 v3, s32, v4')
    A('v_lshlrev_b32 v3, 10, v3')
    A('v_lshrrev_b32 v5, 5, v1')
    A('v_lshlrev_b32 v6, 6, v5')
    A('v_add_u32 v3, v3, v6')
    A('v_lshrrev_b32 v14, 2, v0')
    A('v_and_b32 v15, 3, v0')
    A('v_mul_u32_u24 v15, 6, v15')
    A('s_movk_i32 s34, 3072')
    A('v_mul_lo_u32 v16, v14, s34')
    A('s_lshl_b32 s35, s30, 8')
    A('v_add_u32 v16, s35, v16')
    A('s_lshl_b32 s36, s30, 7')
    A('s_sub_u32 s36, 1792, s36')
    A('v_mov_b32 v17, s36')
    for e in range(6):
        A(f'v_add_u32 v18, {e}, v15')
        A(f'v_lshl_add_u32 v{8+e}, v18, 4, v16')
        A('v_cmp_le_u32 vcc, 16, v18')
        A('v_cndmask_b32 v19, 0, v17, vcc')
        A(f'v_add_u32 v{8+e}, v{8+e}, v19')
    A('s_movk_i32 s37, 448')
    A('v_mul_lo_u32 v7, v14, s37')
    A('v_lshl_add_u32 v7, v15, 4, v7')
    A('v_lshrrev_b32 v16, 2, v1')
    A('v_and_b32 v16, 3, v16')
    A('v_lshl_add_u32 v16, v5, 5, v16')
    A('v_mul_lo_u32 v20, v16, s37')
    A('v_lshrrev_b32 v17, 4, v1')
    A('v_and_b32 v17, 1, v17')
    A('v_lshlrev_b32 v17, 5, v17')
    A('v_and_b32 v18, 3, v1')
    A('v_lshl_add_u32 v17, v18, 3, v17')
    A('v_add_u32 v20, v20, v17')
    for r in range(128, 224):
        A(f'v_mov_b32 v{r}, 0')
    XB = [64, 80]
    WST = 96
    WF = [32, 224]
    LB = [0, 28672]
    def issue_loads(c_sgpr_x, c_sgpr_w, xb):
        for e in range(6):
            A(f'buffer_load_dwordx4 v[{WST+4*e}:{WST+4*e+3}], v{8+e}, s[16:19], {c_sgpr_w} offen')
        for i in range(4):
            A(f'buffer_load_dwordx4 v[{xb+4*i}:{xb+4*i+3}], v3, s[12:15], {c_sgpr_x} offen offset:{16*i}')
    def lds_write(lb):
        for e in range(6):
            A(f'ds_write_b128 v7, v[{WST+4*e}:{WST+4*e+3}] offset:{lb+16*e}')
    def tr_reads(lb, i, wf):
        for b in range(6):
            off = lb + i*8*448 + b*64
            A(f'ds_read_b64_tr_b16 v[{wf+4*b}:{wf+4*b+1}], v20 offset:{off}')
            A(f'ds_read_b64_tr_b16 v[{wf+4*b+2}:{wf+4*b+3}], v20 offset:{off+4*448}')
    def mfmas(i, wf, xb):
        for b in range(6):
            acc = 128 + 16*b
            xf = f'v[{xb+4*i}:{xb+4*i+3}]'
            wfr = f'v[{wf+4*b}:{wf+4*b+3}]'
            if b < 4:
                A(f'v_mfma_f32_32x32x16_bf16 v[{acc}:{acc+15}], {wfr}, {xf}, v[{acc}:{acc+15}]')
            else:
                A(f'v_mfma_f32_32x32x16_bf16 v[{acc}:{acc+15}], {xf}, {wfr}, v[{acc}:{acc+15}]')
    A('s_mov_b32 s40, 0')
    A('s_mov_b32 s41, 0')
    issue_loads('s40', 's41', XB[0])
    A('s_waitcnt vmcnt(0)')
    lds_write(LB[0])
    A('s_waitcnt lgkmcnt(0)')
    A('s_barrier')
    for c in range(8):
        cur = c & 1
        if c < 7:
            A(f's_mov_b32 s40, {(c+1)*128}')
            A(f's_mov_b32 s41, {(c+1)*196608}')
            issue_loads('s40', 's41', XB[cur^1])
        tr_reads(LB[cur], 0, WF[0])
        for i in range(4):
            if i < 3:
                tr_reads(LB[cur], i+1, WF[(i+1)&1])
                A('s_waitcnt lgkmcnt(12)')
            else:
                A('s_waitcnt lgkmcnt(0)')
            mfmas(i, WF[i&1], XB[cur])
        if c < 7:
            A('s_waitcnt vmcnt(0)')
            lds_write(LB[cur^1])
            A('s_waitcnt lgkmcnt(0)')
            A('s_barrier')
    A('s_cmp_ge_u32 s30, 4')
    A(f's_mov_b32 s42, {f32hex(CSCALE)}')
    A('s_cselect_b32 s42, 1.0, s42')
    A('s_cselect_b32 s43, 1, 0')
    A('v_lshlrev_b32 v21, 5, v4')
    A('v_lshl_add_u32 v21, v5, 3, v21')
    A('s_lshl_b32 s44, s43, 22')
    A('s_lshl_b32 s45, s24, 5')
    A('s_and_b32 s46, s30, 3')
    A('s_lshl_b32 s46, s46, 3')
    A('s_add_u32 s45, s45, s46')
    A('s_lshl_b32 s45, s45, 11')
    A('s_add_u32 s45, s45, s32')
    A('s_lshl_b32 s45, s45, 5')
    A('s_add_u32 s44, s44, s45')
    for b in range(4):
        acc = 128 + 16*b
        for g in range(4):
            r0 = acc + 4*g
            for t in range(4):
                A(f'v_mul_f32 v{r0+t}, s42, v{r0+t}')
            A(f'v_cvt_pk_bf16_f32 v{24+2*g}, v{r0}, v{r0+1}')
            A(f'v_cvt_pk_bf16_f32 v{25+2*g}, v{r0+2}, v{r0+3}')
        for g in range(4):
            head_off = (2*b + (g>>1)) * 2048 * 32 + (g&1)*16
            A(f's_add_u32 s47, s44, {head_off}')
            A(f'buffer_store_dwordx2 v[{24+2*g}:{25+2*g}], v21, s[20:23], s47 offen')
    A('v_lshrrev_b32 v22, 4, v1')
    A('v_and_b32 v22, 1, v22')
    A('v_lshlrev_b32 v22, 16, v22')
    A('v_lshl_add_u32 v22, v5, 8, v22')
    A('v_and_b32 v23, 15, v1')
    A('v_lshl_add_u32 v22, v23, 4, v22')
    A('s_lshl_b32 s45, s24, 5')
    A('s_lshl_b32 s46, s30, 2')
    A('s_add_u32 s45, s45, s46')
    A('s_lshl_b32 s45, s45, 6')
    A('s_lshl_b32 s46, s29, 2')
    A('s_add_u32 s46, s46, s31')
    A('s_add_u32 s45, s45, s46')
    A('s_lshl_b32 s45, s45, 10')
    A(f's_add_u32 s45, s45, {WS_V}')
    for b in (4, 5):
        acc = 128 + 16*b
        for m in range(2):
            for t in range(4):
                A(f'v_cvt_pk_bf16_f32 v{24+4*m+t}, v{acc+8*m+2*t}, v{acc+8*m+2*t+1}')
            A(f's_add_u32 s47, s45, {(2*(b-4))*65536 + m*512}')
            A(f'buffer_store_dwordx4 v[{24+4*m}:{27+4*m}], v22, s[20:23], s47 offen')
    A('s_waitcnt vmcnt(0)')
    A.label('L_k1_end')
    A('s_endpgm')
    return name

KD_TMPL = '''
.section .rodata,"a"
.p2align 6
.amdhsa_kernel {name}
  .amdhsa_next_free_vgpr {vgpr}
  .amdhsa_next_free_sgpr {sgpr}
  .amdhsa_accum_offset {acc}
  .amdhsa_group_segment_fixed_size 0
  .amdhsa_kernarg_size 72
  .amdhsa_user_sgpr_count 2
  .amdhsa_user_sgpr_kernarg_segment_ptr 1
  .amdhsa_system_sgpr_workgroup_id_x 1
.end_amdhsa_kernel
.text
'''
def kd(name, vgpr, sgpr=96):
    return KD_TMPL.format(name=name, vgpr=vgpr, sgpr=sgpr, acc=(vgpr+3)//4*4)
if __name__ == '__main__':
    a = Asm()
    gen_k1(a)
    print(a.text())
```

```python
from asmlib import Asm
from gen_k1 import WS_Q, WS_K, WS_V, WS_O, f32hex
THR = 16.0

QF = 4
KF = [8, 12]
VF = [16, 24]
SS = [32, 48]
PP = 64
NEGM = 72
OO = 88
CM = 104
VT = 120
V_KADDR, V_VADDR, V_KQ = 1, 2, 3

class K2:
    def __init__(self, A):
        self.A = A
        self.rare = []
        self.cnt = 0
    def frag_reads(self, off, slot):
        A = self.A
        A(f'ds_read_b128 v[{KF[slot]}:{KF[slot]+3}], v{V_KADDR} offset:{off}')
        A('s_mov_b64 exec, s[50:51]')
        A(f'ds_read_b128 v[{VF[slot]}:{VF[slot]+3}], v{V_VADDR} offset:{off+4096}')
        A(f'ds_read_b128 v[{VF[slot]+4}:{VF[slot]+7}], v{V_VADDR} offset:{off+4096+512}')
        A('s_mov_b64 exec, -1')
    def s_mfma(self, slot, mode):
        A = self.A
        S = SS[slot]
        if mode is None:
            c = f'v[{NEGM}:{NEGM+15}]'
        else:
            for r in range(16):
                imm = 8*(r//4) + r%4
                if mode == 'diag':
                    A(f'v_cmp_gt_i32 vcc, {imm}, v{V_KQ}')
                else:
                    A(f'v_cmp_le_i32 vcc, {imm}, v{V_KQ}')
                A(f'v_cndmask_b32 v{CM+r}, v{NEGM+r}, v{VT+7}, vcc')
            c = f'v[{CM}:{CM+15}]'
        A(f'v_mfma_f32_32x32x16_bf16 v[{S}:{S+15}], v[{KF[slot]}:{KF[slot]+3}], v[{QF}:{QF+3}], {c}')
    def update_block(self, slot, first):
        A = self.A
        S = SS[slot]
        t = VT; u = VT+1
        A(f'v_mov_b32 v{u}, v{t}')
        A(f'v_permlane32_swap_b32 v{u}, v{t}')
        A(f'v_max_f32 v{t}, v{t}, v{u}')
        if not first:
            A(f'v_max_f32 v{t}, 0, v{t}')
            A(f'v_sub_f32 v{u}, 0, v{t}')
            A(f'v_exp_f32 v{u}, v{u}')
            for r in range(16):
                A(f'v_mul_f32 v{OO+r}, v{OO+r}, v{u}')
        for r in range(16):
            A(f'v_sub_f32 v{S+r}, v{S+r}, v{t}')
        for r in range(16):
            A(f'v_sub_f32 v{NEGM+r}, v{NEGM+r}, v{t}')
    def softmax_pv(self, slot, first=False, next_s=None):
        A = self.A
        S = SS[slot]; t = VT
        A(f'v_max3_f32 v{t}, v{S}, v{S+1}, v{S+2}')
        for r in range(3, 15, 2):
            A(f'v_max3_f32 v{t}, v{t}, v{S+r}, v{S+r+1}')
        A(f'v_max_f32 v{t}, v{t}, v{S+15}')
        if first:
            self.update_block(slot, True)
        else:
            k = self.cnt; self.cnt += 1
            A(f'v_cmp_lt_f32 vcc, s52, v{t}')
            A(f's_cbranch_vccnz L_rare_{k}')
            A.label(f'L_back_{k}')
            self.rare.append((k, slot))
        if next_s is not None:
            next_s()
        for r in range(16):
            A(f'v_exp_f32 v{S+r}, v{S+r}')
        for r in range(8):
            A(f'v_cvt_pk_bf16_f32 v{PP+r}, v{S+2*r}, v{S+2*r+1}')
        A(f'v_mfma_f32_32x32x16_bf16 v[{OO}:{OO+15}], v[{VF[slot]}:{VF[slot]+3}], v[{PP}:{PP+3}], v[{OO}:{OO+15}]')
        A(f'v_mfma_f32_32x32x16_bf16 v[{OO}:{OO+15}], v[{VF[slot]+4}:{VF[slot]+7}], v[{PP+4}:{PP+7}], v[{OO}:{OO+15}]')
    def emit_rare(self):
        A = self.A
        for k, slot in self.rare:
            A.label(f'L_rare_{k}')
            self.update_block(slot, False)
            A(f's_branch L_back_{k}')
    def dma_chunk(self, buf, s_koff, s_voff):
        A = self.A
        A(f's_add_u32 s60, s58, {buf}')
        A('s_mov_b32 m0, s60')
        A(f'buffer_load_dwordx4 v{VT+6}, s[20:23], {s_koff} offen lds')
        A(f's_add_u32 s60, s58, {buf+4096}')
        A('s_mov_b32 m0, s60')
        A(f'buffer_load_dwordx4 v{VT+6}, s[20:23], {s_voff} offen lds')

def gen_k2(A: Asm, name='attn_kernel'):
    g = K2(A)
    A.raw(f'.globl {name}\n.p2align 8\n.type {name},@function\n{name}:')
    A('s_cmp_ge_u32 s2, 1024')
    A('s_cbranch_scc1 L_k2_end')
    A('s_load_dwordx2 s[8:9], s[0:1], 64')
    A('s_lshr_b32 s24, s2, 9')
    A('s_and_b32 s25, s2, 511')
    A('s_and_b32 s26, s25, 7')
    A('s_lshl_b32 s26, s26, 2')
    A('s_lshr_b32 s27, s25, 3')
    A('s_and_b32 s27, s27, 3')
    A('s_add_u32 s26, s26, s27')
    A('s_lshr_b32 s27, s25, 5')
    A('s_sub_u32 s28, 1, s24')
    A('s_lshl_b32 s29, s28, 5')
    A('s_add_u32 s29, s29, s26')
    A('v_and_b32 v120, 63, v0')
    A('v_lshrrev_b32 v121, 6, v0')
    A('s_nop 0')
    A('v_readfirstlane_b32 s30, v121')
    A('s_waitcnt lgkmcnt(0)')
    A('s_mov_b32 s20, s8')
    A('s_and_b32 s21, s9, 0xffff')
    A('s_mov_b32 s22, 16777216')
    A('s_mov_b32 s23, 0x00020000')
    A('v_and_b32 v122, 31, v120')
    A('v_lshrrev_b32 v123, 5, v120')
    A('s_lshl_b32 s31, s27, 7')
    A('s_lshl_b32 s32, s30, 5')
    A('s_add_u32 s31, s31, s32')
    A('s_lshl_b32 s32, s29, 11')
    A('s_add_u32 s32, s32, s31')
    A('s_lshl_b32 s32, s32, 5')
    A('v_lshlrev_b32 v124, 5, v122')
    A('v_lshl_add_u32 v124, v123, 4, v124')
    A(f'buffer_load_dwordx4 v[{QF}:{QF+3}], v124, s[20:23], s32 offen')
    A(f'v_lshlrev_b32 v{V_KADDR}, 5, v122')
    A(f'v_lshl_add_u32 v{V_KADDR}, v123, 4, v{V_KADDR}')
    A(f'v_and_b32 v125, 15, v120')
    A(f'v_lshlrev_b32 v{V_VADDR}, 4, v125')
    A(f'v_lshl_add_u32 v{V_VADDR}, v123, 8, v{V_VADDR}')
    A(f'v_lshlrev_b32 v125, 2, v123')
    A(f'v_sub_u32 v{V_KQ}, v122, v125')
    A(f'v_lshlrev_b32 v{VT+6}, 4, v120')
    A(f'v_mov_b32 v{VT+7}, 0xff800000')
    A('s_mov_b32 s50, 0xffff')
    A('s_mov_b32 s51, 0xffff')
    A(f's_mov_b32 s52, {f32hex(THR)}')
    A('v_mov_b32 v125, 0')
    A('v_mov_b32 v121, 0x3f803f80')
    A('v_cmp_eq_u32 vcc, 16, v122')
    A('v_cndmask_b32 v125, v125, v121, vcc')
    A('v_cmp_eq_u32 vcc, 20, v122')
    A('v_cndmask_b32 v125, v125, v121, vcc')
    for s in range(2):
        for r in range(8):
            A(f'v_mov_b32 v{VF[s]+r}, v125')
    for r in range(16):
        A(f'v_mov_b32 v{NEGM+r}, 0')
        A(f'v_mov_b32 v{OO+r}, 0')
    A('s_lshl_b32 s58, s30, 10')
    A('s_lshl_b32 s33, s29, 16')
    A('s_add_u32 s33, s33, s58')
    A(f's_add_u32 s34, s33, {WS_V}')
    A(f's_add_u32 s33, s33, {WS_K}')
    A('s_cmp_eq_u32 s24, 1')
    A('s_cbranch_scc1 L_k2_A')
    g.dma_chunk(0, 's33', 's34')
    A('s_add_u32 s33, s33, 4096')
    A('s_add_u32 s34, s34, 4096')
    A('s_waitcnt vmcnt(0)')
    A('s_barrier')
    A('s_mov_b32 s35, 0')
    for it in range(2):
        if it == 1:
            A.label('L_B_loop')
        for cc in range(2):
            buf = cc * 8192
            nbuf = (cc^1) * 8192
            if it == 1 and cc == 1:
                A('s_cmp_eq_u32 s35, 6')
                A('s_cbranch_scc1 L_B_skipdma')
            g.dma_chunk(nbuf, 's33', 's34')
            A('s_add_u32 s33, s33, 4096')
            A('s_add_u32 s34, s34, 4096')
            if it == 1 and cc == 1:
                A.label('L_B_skipdma')
            g.frag_reads(buf, 0)
            A('s_waitcnt lgkmcnt(0)')
            g.s_mfma(0, None)
            for t in range(4):
                slot = t & 1
                if t < 3:
                    g.frag_reads(buf + (t+1)*1024, slot^1)
                    def nxt(slot=slot):
                        A('s_waitcnt lgkmcnt(0)')
                        g.s_mfma(slot^1, None)
                    g.softmax_pv(slot, first=(it==0 and cc==0 and t==0), next_s=nxt)
                else:
                    g.softmax_pv(slot)
            A('s_waitcnt vmcnt(0)')
            A('s_barrier')
        if it == 1:
            A('s_add_u32 s35, s35, 1')
            A('s_cmp_lt_u32 s35, 7')
            A('s_cbranch_scc1 L_B_loop')
    A('s_branch L_k2_fin')
    A.label('L_k2_A')
    A('s_lshl_b32 s36, s27, 12')
    A('s_add_u32 s33, s33, s36')
    A('s_add_u32 s34, s34, s36')
    g.dma_chunk(0, 's33', 's34')
    A('s_cmp_lt_u32 s27, 1')
    A('s_cbranch_scc1 L_A_ld_done')
    A('s_sub_u32 s33, s33, 4096')
    A('s_sub_u32 s34, s34, 4096')
    g.dma_chunk(8192, 's33', 's34')
    A('s_cmp_lt_u32 s27, 2')
    A('s_cbranch_scc1 L_A_ld_done')
    A('s_sub_u32 s33, s33, 4096')
    A('s_sub_u32 s34, s34, 4096')
    g.dma_chunk(16384, 's33', 's34')
    A.label('L_A_ld_done')
    A('s_waitcnt vmcnt(0)')
    A('s_barrier')
    A('s_min_u32 s37, s27, 2')
    A('s_lshl_b32 s37, s37, 2')
    A('s_sub_u32 s37, 8, s37')
    for w in range(4):
        if w < 3:
            A(f's_cmp_eq_u32 s30, {w}')
            A(f's_cbranch_scc0 L_A_w{w+1}')
        for T in range(w+8, w-1, -1):
            c, t = T // 4, T % 4
            off = (2-c)*8192 + t*1024
            mode = 'diag' if T == w+8 else ('far' if T == w else None)
            if T < 8:
                A(f's_cmp_gt_u32 s37, {T}')
                A('s_cbranch_scc1 L_k2_fin')
            g.frag_reads(off, 0)
            A('s_waitcnt lgkmcnt(0)')
            g.s_mfma(0, mode)
            g.softmax_pv(0, first=(T == w+8))
        A('s_branch L_k2_fin')
        if w < 3:
            A.label(f'L_A_w{w+1}')
    A.label('L_k2_fin')
    A('s_nop 15')
    A(f'v_rcp_f32 v{VT}, v{OO+8}')
    for r in range(8):
        A(f'v_mul_f32 v{OO+r}, v{OO+r}, v{VT}')
    for r in range(4):
        A(f'v_cvt_pk_bf16_f32 v{PP+r}, v{OO+2*r}, v{OO+2*r+1}')
    A('v_lshlrev_b32 v124, 5, v122')
    A('v_lshl_add_u32 v124, v123, 3, v124')
    A(f's_add_u32 s32, s32, {WS_O}')
    A(f'buffer_store_dwordx2 v[{PP}:{PP+1}], v124, s[20:23], s32 offen')
    A(f'buffer_store_dwordx2 v[{PP+2}:{PP+3}], v124, s[20:23], s32 offen offset:16')
    A('s_waitcnt vmcnt(0)')
    A('s_branch L_k2_end')
    g.emit_rare()
    A.label('L_k2_end')
    A('s_endpgm')
    return name
if __name__ == '__main__':
    a = Asm(); gen_k2(a); print(a.text())
```

```python
from asmlib import Asm
from gen_k1 import WS_O
def gen_k3(A: Asm, name='oproj_kernel'):
    A.raw(f'.globl {name}\n.p2align 8\n.type {name},@function\n{name}:')
    A('s_cmp_ge_u32 s2, 256')
    A('s_cbranch_scc1 L_k3_end')
    A('s_lshr_b32 s24, s2, 7')
    A('s_mul_i32 s25, s24, 24')
    A('s_add_u32 s26, s0, s25')
    A('s_addc_u32 s27, s1, 0')
    A('s_load_dwordx2 s[4:5], s[26:27], 16')
    A('s_load_dwordx2 s[6:7], s[0:1], 48')
    A('s_load_dwordx2 s[8:9], s[0:1], 64')
    A('s_and_b32 s28, s2, 127')
    A('s_lshr_b32 s29, s28, 3')
    A('s_and_b32 s30, s28, 7')
    A('v_and_b32 v1, 63, v0')
    A('v_lshrrev_b32 v2, 6, v0')
    A('s_nop 0')
    A('v_readfirstlane_b32 s31, v2')
    A('s_waitcnt lgkmcnt(0)')
    for (d, lo, hi, sz) in ((12,4,5,524288),(16,6,7,4194304),(20,8,9,16*1024*1024)):
        A(f's_mov_b32 s{d}, s{lo}')
        A(f's_and_b32 s{d+1}, s{hi}, 0xffff')
        A(f's_mov_b32 s{d+2}, {sz}')
        A(f's_mov_b32 s{d+3}, 0x00020000')
    A('s_lshl_b32 s32, s29, 7')
    A('s_lshl_b32 s33, s31, 5')
    A('s_add_u32 s32, s32, s33')
    A('v_and_b32 v4, 31, v1')
    A('v_lshrrev_b32 v5, 5, v1')
    A('v_add_u32 v3, s32, v4')
    A('v_lshlrev_b32 v3, 5, v3')
    A('v_lshl_add_u32 v3, v5, 4, v3')
    A('v_lshrrev_b32 v14, 2, v0')
    A('v_and_b32 v15, 3, v0')
    A('v_lshlrev_b32 v15, 5, v15')
    A('v_lshlrev_b32 v8, 10, v14')
    A('s_lshl_b32 s34, s30, 7')
    A('v_add3_u32 v8, v8, v15, s34')
    A('s_movk_i32 s35, 192')
    A('v_mul_lo_u32 v7, v14, s35')
    A('v_add_u32 v7, v7, v15')
    A('v_lshrrev_b32 v16, 2, v1')
    A('v_and_b32 v16, 3, v16')
    A('v_lshl_add_u32 v16, v5, 3, v16')
    A('v_mul_lo_u32 v20, v16, s35')
    A('v_lshrrev_b32 v17, 4, v1')
    A('v_and_b32 v17, 1, v17')
    A('v_lshlrev_b32 v17, 5, v17')
    A('v_and_b32 v18, 3, v1')
    A('v_lshl_add_u32 v17, v18, 3, v17')
    A('v_add_u32 v20, v20, v17')
    for r in range(64, 96):
        A(f'v_mov_b32 v{r}, 0')
    OB = [96, 112]; WST = 40; WF = [24, 32]; LB = [0, 12288]
    A('s_lshl_b32 s36, s24, 21')
    A(f's_add_u32 s36, s36, {WS_O}')
    def loads(c, ob):
        for e in range(2):
            A(f'buffer_load_dwordx4 v[{WST+4*e}:{WST+4*e+3}], v8, s[12:15], s37 offen offset:{16*e}')
        for i in range(4):
            A(f's_add_u32 s38, s36, {(4*c+i)*65536}')
            A(f'buffer_load_dwordx4 v[{ob+4*i}:{ob+4*i+3}], v3, s[20:23], s38 offen')
    def wr(lb):
        for e in range(2):
            A(f'ds_write_b128 v7, v[{WST+4*e}:{WST+4*e+3}] offset:{lb+16*e}')
    def trr(lb, i, wf):
        for b in range(2):
            off = lb + i*16*192 + b*64
            A(f'ds_read_b64_tr_b16 v[{wf+4*b}:{wf+4*b+1}], v20 offset:{off}')
            A(f'ds_read_b64_tr_b16 v[{wf+4*b+2}:{wf+4*b+3}], v20 offset:{off+4*192}')
    A('s_mov_b32 s37, 0')
    loads(0, OB[0])
    A('s_waitcnt vmcnt(0)')
    wr(LB[0])
    A('s_waitcnt lgkmcnt(0)')
    A('s_barrier')
    for c in range(8):
        cur = c & 1
        if c < 7:
            A(f's_mov_b32 s37, {(c+1)*65536}')
            loads(c+1, OB[cur^1])
        trr(LB[cur], 0, WF[0])
        for i in range(4):
            if i < 3:
                trr(LB[cur], i+1, WF[(i+1)&1])
                A('s_waitcnt lgkmcnt(4)')
            else:
                A('s_waitcnt lgkmcnt(0)')
            for b in range(2):
                acc = 64 + 16*b
                A(f'v_mfma_f32_32x32x16_bf16 v[{acc}:{acc+15}], v[{WF[i&1]+4*b}:{WF[i&1]+4*b+3}], v[{OB[cur]+4*i}:{OB[cur]+4*i+3}], v[{acc}:{acc+15}]')
        if c < 7:
            A('s_waitcnt vmcnt(0)')
            wr(LB[cur^1])
            A('s_waitcnt lgkmcnt(0)')
            A('s_barrier')
    A('v_add_u32 v21, s32, v4')
    A('v_lshlrev_b32 v21, 11, v21')
    A('v_lshl_add_u32 v21, v5, 3, v21')
    A('s_lshl_b32 s39, s24, 10')
    A('s_lshl_b32 s40, s30, 7')
    A('s_add_u32 s39, s39, s40')
    for b in range(2):
        acc = 64 + 16*b
        for g in range(4):
            A(f'v_cvt_pk_bf16_f32 v{24+2*g}, v{acc+4*g}, v{acc+4*g+1}')
            A(f'v_cvt_pk_bf16_f32 v{25+2*g}, v{acc+4*g+2}, v{acc+4*g+3}')
        for g in range(4):
            A(f'buffer_store_dwordx2 v[{24+2*g}:{25+2*g}], v21, s[16:19], s39 offen offset:{64*b+16*g}')
    A('s_waitcnt vmcnt(0)')
    A.label('L_k3_end')
    A('s_endpgm')
    return name
```

```python
import sys
sys.path.insert(0, 'work')
from asmlib import Asm
from gen_k1 import gen_k1, kd
from gen_k2 import gen_k2
from gen_k3 import gen_k3
NAME = 'concat_heads__sliding_block__softmax_full_mha__prompt'
ref = open(f'cdna_kernels/{NAME}.s.ref').read()
hdr = []
for line in ref.splitlines():
    if line.startswith(';') and '@launch' not in line:
        hdr.append(line)
    elif not line.startswith(';'):
        break
kernels = [(gen_k1, 'qkv_kernel', 248, 256, 86016), (gen_k2, 'attn_kernel', 128, 1024, 24576), (gen_k3, 'oproj_kernel', 144, 256, 36864)]
txt = '\n'.join(hdr) + '\n'
for g, n, v, grid, lds in kernels:
    txt += f'; @launch kernel={n} grid=({grid},1,1) block=(256,1,1) lds={lds}\n'
txt += '.amdgcn_target "amdgcn-amd-amdhsa--gfx950"\n.text\n'
for g, n, v, grid, lds in kernels:
    a = Asm(); g(a, n); txt += a.text()
for g, n, v, grid, lds in kernels:
    txt += kd(n, v, agpr=(96 if n=='qkv_kernel' else 0))
open(f'cdna_kernels/{NAME}.s', 'w').write(txt)
print('written', len(txt))
```

```python
from asmlib import Asm
WS_Q = 0
WS_K = 4*1024*1024
WS_V = 8*1024*1024
WS_O = 12*1024*1024
WS_BYTES = 16*1024*1024
CSCALE_HEX = None
import struct, math
def f32hex(x): return '0x%08x' % struct.unpack('<I', struct.pack('<f', x))[0]
CSCALE = 0.25 * math.log2(math.e)

def gen_k1(a: Asm, name='qkv_kernel'):
    A = a
    A.raw(f'.globl {name}\n.p2align 8\n.type {name},@function\n{name}:')
    A('s_cmp_ge_u32 s2, 256')
    A('s_cbranch_scc1 L_k1_end')
    A('s_lshr_b32 s24, s2, 7')
    A('s_mul_i32 s25, s24, 24')
    A('s_add_u32 s26, s0, s25')
    A('s_addc_u32 s27, s1, 0')
    A('s_load_dwordx4 s[4:7], s[26:27], 0')
    A('s_load_dwordx2 s[8:9], s[0:1], 64')
    A('s_and_b32 s28, s2, 127')
    A('s_lshr_b32 s29, s28, 3')
    A('s_and_b32 s30, s28, 7')
    A('v_and_b32 v1, 63, v0')
    A('v_lshrrev_b32 v2, 6, v0')
    A('s_nop 0')
    A('v_readfirstlane_b32 s31, v2')
    A('s_waitcnt lgkmcnt(0)')
    for (d, lo, hi, sz) in ((12,4,5,2097152),(16,6,7,1572864),(20,8,9,12*1024*1024)):
        A(f's_mov_b32 s{d}, s{lo}')
        A(f's_and_b32 s{d+1}, s{hi}, 0xffff')
        A(f's_mov_b32 s{d+2}, {sz}')
        A(f's_mov_b32 s{d+3}, 0x00020000')
    A('s_lshl_b32 s32, s29, 7')
    A('s_lshl_b32 s33, s31, 5')
    A('s_add_u32 s32, s32, s33')
    A('v_and_b32 v4, 31, v1')
    A('v_add_u32 v3, s32, v4')
    A('v_lshlrev_b32 v3, 10, v3')
    A('v_lshrrev_b32 v5, 5, v1')
    A('v_lshlrev_b32 v6, 6, v5')
    A('v_add_u32 v3, v3, v6')
    A('v_lshrrev_b32 v14, 2, v0')
    A('v_and_b32 v15, 3, v0')
    A('v_mul_u32_u24 v15, 6, v15')
    A('s_movk_i32 s34, 3072')
    A('v_mul_lo_u32 v16, v14, s34')
    A('s_lshl_b32 s35, s30, 8')
    A('v_add_u32 v16, s35, v16')
    A('s_lshl_b32 s36, s30, 7')
    A('s_sub_u32 s36, 1792, s36')
    A('v_mov_b32 v17, s36')
    for e in range(6):
        A(f'v_add_u32 v18, {e}, v15')
        A(f'v_lshl_add_u32 v{8+e}, v18, 4, v16')
        A('v_cmp_le_u32 vcc, 16, v18')
        A('v_cndmask_b32 v19, 0, v17, vcc')
        A(f'v_add_u32 v{8+e}, v{8+e}, v19')
    A('s_movk_i32 s37, 448')
    A('v_mul_lo_u32 v7, v14, s37')
    A('v_lshl_add_u32 v7, v15, 4, v7')
    A('v_lshrrev_b32 v16, 2, v1')
    A('v_and_b32 v16, 3, v16')
    A('v_lshl_add_u32 v16, v5, 5, v16')
    A('v_mul_lo_u32 v20, v16, s37')
    A('v_lshrrev_b32 v17, 4, v1')
    A('v_and_b32 v17, 1, v17')
    A('v_lshlrev_b32 v17, 5, v17')
    A('v_and_b32 v18, 3, v1')
    A('v_lshl_add_u32 v17, v18, 3, v17')
    A('v_add_u32 v20, v20, v17')
    A('v_add_u32 v6, 57344, v20')
    A('v_add_u32 v19, 57344, v7')
    for r in range(96):
        A(f'v_accvgpr_write_b32 a{r}, 0')
    XB = [64, 80, 128]
    WSTS = [96, 144]
    WF = [32, 224]
    LB = [0, 28672, 57344]
    def issue_loads(c, ):
        A(f's_mov_b32 s40, {c*128}')
        A(f's_mov_b32 s41, {c*196608}')
        WST = WSTS[c&1]; xb = XB[c%3]
        for e in range(6):
            A(f'buffer_load_dwordx4 v[{WST+4*e}:{WST+4*e+3}], v{8+e}, s[16:19], s41 offen')
        for i in range(4):
            A(f'buffer_load_dwordx4 v[{xb+4*i}:{xb+4*i+3}], v3, s[12:15], s40 offen offset:{16*i}')
    def lds_write(c):
        WST = WSTS[c&1]; lb = LB[c%3]
        for e in range(6):
            rg, lo = ('v19', lb-57344) if lb >= 57344 else ('v7', lb)
            A(f'ds_write_b128 {rg}, v[{WST+4*e}:{WST+4*e+3}] offset:{lo+16*e}')
    def tr_reads(lb, i, wf):
        import os
        if os.environ.get('NOTR'): return
        for b in range(6):
            rg, lo = ('v6', lb-57344) if lb >= 57344 else ('v20', lb)
            off = lo + i*8*448 + b*64
            A(f'ds_read_b64_tr_b16 v[{wf+4*b}:{wf+4*b+1}], {rg} offset:{off}')
            A(f'ds_read_b64_tr_b16 v[{wf+4*b+2}:{wf+4*b+3}], {rg} offset:{off+4*448}')
    def mfmas(i, wf, xb):
        import os
        if os.environ.get('NOMFMA'): return
        for b in range(6):
            acc = 16*b
            xf = f'v[{xb+4*i}:{xb+4*i+3}]'
            wfr = f'v[{wf+4*b}:{wf+4*b+3}]'
            if b < 4:
                A(f'v_mfma_f32_32x32x16_bf16 a[{acc}:{acc+15}], {wfr}, {xf}, a[{acc}:{acc+15}]')
            else:
                A(f'v_mfma_f32_32x32x16_bf16 a[{acc}:{acc+15}], {xf}, {wfr}, a[{acc}:{acc+15}]')
    issue_loads(0)
    issue_loads(1)
    A('s_waitcnt vmcnt(10)')
    lds_write(0)
    A('s_waitcnt lgkmcnt(0)')
    A('s_barrier')
    for c in range(8):
        lb = LB[c%3]
        if c + 2 < 8:
            issue_loads(c+2)
        tr_reads(lb, 0, WF[0])
        for i in range(4):
            if i < 3:
                tr_reads(lb, i+1, WF[(i+1)&1])
                A('s_waitcnt lgkmcnt(12)')
            else:
                A('s_waitcnt lgkmcnt(0)')
            mfmas(i, WF[i&1], XB[c%3])
        if c < 7:
            A('s_waitcnt vmcnt(10)' if c + 2 < 8 else 's_waitcnt vmcnt(0)')
            lds_write(c+1)
            A('s_waitcnt lgkmcnt(0)')
            A('s_barrier')
    A('s_nop 15')
    for r in range(96):
        A(f'v_accvgpr_read_b32 v{128+r}, a{r}')
    A('s_cmp_ge_u32 s30, 4')
    A(f's_mov_b32 s42, {f32hex(CSCALE)}')
    A('s_cselect_b32 s42, 1.0, s42')
    A('s_cselect_b32 s43, 1, 0')
    A('v_lshlrev_b32 v21, 5, v4')
    A('v_lshl_add_u32 v21, v5, 3, v21')
    A('s_lshl_b32 s44, s43, 22')
    A('s_lshl_b32 s45, s24, 5')
    A('s_and_b32 s46, s30, 3')
    A('s_lshl_b32 s46, s46, 3')
    A('s_add_u32 s45, s45, s46')
    A('s_lshl_b32 s45, s45, 11')
    A('s_add_u32 s45, s45, s32')
    A('s_lshl_b32 s45, s45, 5')
    A('s_add_u32 s44, s44, s45')
    for b in range(4):
        acc = 128 + 16*b
        for g in range(4):
            r0 = acc + 4*g
            for t in range(4):
                A(f'v_mul_f32 v{r0+t}, s42, v{r0+t}')
            A(f'v_cvt_pk_bf16_f32 v{24+2*g}, v{r0}, v{r0+1}')
            A(f'v_cvt_pk_bf16_f32 v{25+2*g}, v{r0+2}, v{r0+3}')
        for g in range(4):
            head_off = (2*b + (g>>1)) * 2048 * 32 + (g&1)*16
            A(f's_add_u32 s47, s44, {head_off}')
            A(f'buffer_store_dwordx2 v[{24+2*g}:{25+2*g}], v21, s[20:23], s47 offen')
    A('v_lshrrev_b32 v22, 4, v1')
    A('v_and_b32 v22, 1, v22')
    A('v_lshlrev_b32 v22, 16, v22')
    A('v_lshl_add_u32 v22, v5, 8, v22')
    A('v_and_b32 v23, 15, v1')
    A('v_lshl_add_u32 v22, v23, 4, v22')
    A('s_lshl_b32 s45, s24, 5')
    A('s_lshl_b32 s46, s30, 2')
    A('s_add_u32 s45, s45, s46')
    A('s_lshl_b32 s45, s45, 6')
    A('s_lshl_b32 s46, s29, 2')
    A('s_add_u32 s46, s46, s31')
    A('s_add_u32 s45, s45, s46')
    A('s_lshl_b32 s45, s45, 10')
    A(f's_add_u32 s45, s45, {WS_V}')
    for b in (4, 5):
        acc = 128 + 16*b
        for m in range(2):
            for t in range(4):
                A(f'v_cvt_pk_bf16_f32 v{24+4*m+t}, v{acc+8*m+2*t}, v{acc+8*m+2*t+1}')
            A(f's_add_u32 s47, s45, {(2*(b-4))*65536 + m*512}')
            A(f'buffer_store_dwordx4 v[{24+4*m}:{27+4*m}], v22, s[20:23], s47 offen')
    A('s_waitcnt vmcnt(0)')
    A.label('L_k1_end')
    A('s_endpgm')
    return name

KD_TMPL = '''
.section .rodata,"a"
.p2align 6
.amdhsa_kernel {name}
  .amdhsa_next_free_vgpr {vgpr}
  .amdhsa_next_free_sgpr {sgpr}
  .amdhsa_accum_offset {acc}
  .amdhsa_group_segment_fixed_size 0
  .amdhsa_kernarg_size 72
  .amdhsa_user_sgpr_count 2
  .amdhsa_user_sgpr_kernarg_segment_ptr 1
  .amdhsa_system_sgpr_workgroup_id_x 1
.end_amdhsa_kernel
.text
'''
def kd(name, vgpr, sgpr=96, agpr=0):
    acc=(vgpr+3)//4*4
    return KD_TMPL.format(name=name, vgpr=(acc+agpr if agpr else vgpr), sgpr=sgpr, acc=acc)
if __name__ == '__main__':
    a = Asm()
    gen_k1(a)
    print(a.text())
```

```python
from asmlib import Asm
from gen_k1 import WS_O
def gen_k3(A: Asm, name='oproj_kernel'):
    A.raw(f'.globl {name}\n.p2align 8\n.type {name},@function\n{name}:')
    A('s_cmp_ge_u32 s2, 256')
    A('s_cbranch_scc1 L_k3_end')
    A('s_lshr_b32 s24, s2, 7')
    A('s_mul_i32 s25, s24, 24')
    A('s_add_u32 s26, s0, s25')
    A('s_addc_u32 s27, s1, 0')
    A('s_load_dwordx2 s[4:5], s[26:27], 16')
    A('s_load_dwordx2 s[6:7], s[0:1], 48')
    A('s_load_dwordx2 s[8:9], s[0:1], 64')
    A('s_and_b32 s28, s2, 127')
    A('s_lshr_b32 s29, s28, 3')
    A('s_and_b32 s30, s28, 7')
    A('v_and_b32 v1, 63, v0')
    A('v_lshrrev_b32 v2, 6, v0')
    A('s_nop 0')
    A('v_readfirstlane_b32 s31, v2')
    A('s_waitcnt lgkmcnt(0)')
    for (d, lo, hi, sz) in ((12,4,5,524288),(16,6,7,4194304),(20,8,9,16*1024*1024)):
        A(f's_mov_b32 s{d}, s{lo}')
        A(f's_and_b32 s{d+1}, s{hi}, 0xffff')
        A(f's_mov_b32 s{d+2}, {sz}')
        A(f's_mov_b32 s{d+3}, 0x00020000')
    A('s_lshl_b32 s32, s29, 7')
    A('s_lshl_b32 s33, s31, 5')
    A('s_add_u32 s32, s32, s33')
    A('v_and_b32 v4, 31, v1')
    A('v_lshrrev_b32 v5, 5, v1')
    A('v_add_u32 v3, s32, v4')
    A('v_lshlrev_b32 v3, 5, v3')
    A('v_lshl_add_u32 v3, v5, 4, v3')
    A('v_lshrrev_b32 v14, 2, v0')
    A('v_and_b32 v15, 3, v0')
    A('v_lshlrev_b32 v15, 5, v15')
    A('v_lshlrev_b32 v8, 10, v14')
    A('s_lshl_b32 s34, s30, 7')
    A('v_add3_u32 v8, v8, v15, s34')
    A('s_movk_i32 s35, 192')
    A('v_mul_lo_u32 v7, v14, s35')
    A('v_add_u32 v7, v7, v15')
    A('v_lshrrev_b32 v16, 2, v1')
    A('v_and_b32 v16, 3, v16')
    A('v_lshl_add_u32 v16, v5, 3, v16')
    A('v_mul_lo_u32 v20, v16, s35')
    A('v_lshrrev_b32 v17, 4, v1')
    A('v_and_b32 v17, 1, v17')
    A('v_lshlrev_b32 v17, 5, v17')
    A('v_and_b32 v18, 3, v1')
    A('v_lshl_add_u32 v17, v18, 3, v17')
    A('v_add_u32 v20, v20, v17')
    for r in range(64, 96):
        A(f'v_mov_b32 v{r}, 0')
    OB = [96, 112, 128]; WSTS = [40, 48]; WF = [24, 32]; LB = [0, 12288, 24576]
    A('s_lshl_b32 s36, s24, 21')
    A(f's_add_u32 s36, s36, {WS_O}')
    def loads(c):
        WST = WSTS[c&1]; ob = OB[c%3]
        A(f's_mov_b32 s37, {c*65536}')
        for e in range(2):
            A(f'buffer_load_dwordx4 v[{WST+4*e}:{WST+4*e+3}], v8, s[12:15], s37 offen offset:{16*e}')
        for i in range(4):
            A(f's_add_u32 s38, s36, {(4*c+i)*65536}')
            A(f'buffer_load_dwordx4 v[{ob+4*i}:{ob+4*i+3}], v3, s[20:23], s38 offen')
    def wr(c):
        WST = WSTS[c&1]; lb = LB[c%3]
        for e in range(2):
            A(f'ds_write_b128 v7, v[{WST+4*e}:{WST+4*e+3}] offset:{lb+16*e}')
    def trr(lb, i, wf):
        for b in range(2):
            off = lb + i*16*192 + b*64
            A(f'ds_read_b64_tr_b16 v[{wf+4*b}:{wf+4*b+1}], v20 offset:{off}')
            A(f'ds_read_b64_tr_b16 v[{wf+4*b+2}:{wf+4*b+3}], v20 offset:{off+4*192}')
    loads(0)
    loads(1)
    A('s_waitcnt vmcnt(6)')
    wr(0)
    A('s_waitcnt lgkmcnt(0)')
    A('s_barrier')
    for c in range(8):
        lb = LB[c%3]
        if c + 2 < 8:
            loads(c+2)
        trr(lb, 0, WF[0])
        for i in range(4):
            if i < 3:
                trr(lb, i+1, WF[(i+1)&1])
                A('s_waitcnt lgkmcnt(4)')
            else:
                A('s_waitcnt lgkmcnt(0)')
            for b in range(2):
                acc = 64 + 16*b
                A(f'v_mfma_f32_32x32x16_bf16 v[{acc}:{acc+15}], v[{WF[i&1]+4*b}:{WF[i&1]+4*b+3}], v[{OB[c%3]+4*i}:{OB[c%3]+4*i+3}], v[{acc}:{acc+15}]')
        if c < 7:
            A('s_waitcnt vmcnt(6)' if c + 2 < 8 else 's_waitcnt vmcnt(0)')
            wr(c+1)
            A('s_waitcnt lgkmcnt(0)')
            A('s_barrier')
    A('v_add_u32 v21, s32, v4')
    A('v_lshlrev_b32 v21, 11, v21')
    A('v_lshl_add_u32 v21, v5, 3, v21')
    A('s_lshl_b32 s39, s24, 10')
    A('s_lshl_b32 s40, s30, 7')
    A('s_add_u32 s39, s39, s40')
    for b in range(2):
        acc = 64 + 16*b
        for g in range(4):
            A(f'v_cvt_pk_bf16_f32 v{24+2*g}, v{acc+4*g}, v{acc+4*g+1}')
            A(f'v_cvt_pk_bf16_f32 v{25+2*g}, v{acc+4*g+2}, v{acc+4*g+3}')
        for g in range(4):
            A(f'buffer_store_dwordx2 v[{24+2*g}:{25+2*g}], v21, s[16:19], s39 offen offset:{64*b+16*g}')
    A('s_waitcnt vmcnt(0)')
    A.label('L_k3_end')
    A('s_endpgm')
    return name
```
